```python
import torch

def _softmax(x, axis=-1):
    return torch.softmax(x, dim=axis)
def _gelu(x):
    return torch.nn.functional.gelu(x, approximate="tanh")
def _silu(x):
    return torch.nn.functional.silu(x)
def _sigmoid(x):
    return torch.sigmoid(x)
def _layernorm(x, axis=-1, eps=1e-5):
    m = x.mean(dim=axis, keepdim=True)
    v = x.var(dim=axis, keepdim=True, unbiased=False)
    return (x - m) / torch.sqrt(v + eps)
def _scatter_add(tgt, idx, src, axis=0):
    return tgt.clone().index_add_(axis, idx, src)
def _segment_sum(src, seg, n):
    out = torch.zeros((n,) + src.shape[1:], dtype=src.dtype)
    return out.index_add_(0, seg, src)
def _pad(x, pw):
    flat = tuple(v for pair in reversed(pw) for v in pair)
    return torch.nn.functional.pad(x, flat)

kernel_name = 'interleave_layers__softmax_full_mha__glu_gated_swiglu__prompt'

def setup_inputs():

    _w = (lambda a: (lambda t: t.to(torch.bfloat16) if t.is_floating_point() else t)(torch.as_tensor(a)))
    def _A_setup():
        B, S, D = 1, 2048, 512
        return {
            "x": _w((lambda *s: torch.randn(*s, dtype=torch.bfloat16) * 0.05)(B, S, D)),
            "wqkv": _w((lambda *s: torch.randn(*s, dtype=torch.bfloat16) * 0.05)(D, 3 * D)),
            "wo": _w((lambda *s: torch.randn(*s, dtype=torch.bfloat16) * 0.05)(D, D)),
        }
    _A_in = _A_setup()

    def _B_setup():
        B, S, D, F = 1, 2048, 512, 1792
        return {
            "x": _w((lambda *s: torch.randn(*s, dtype=torch.bfloat16) * 0.05)(B, S, D)),
            "w1": _w((lambda *s: torch.randn(*s, dtype=torch.bfloat16) * 0.4)(D, F) * (2.0 / D) ** 0.5),
            "w3": _w((lambda *s: torch.randn(*s, dtype=torch.bfloat16) * 0.4)(D, F) * (2.0 / D) ** 0.5),
            "w2": _w((lambda *s: torch.randn(*s, dtype=torch.bfloat16) * 0.4)(F, D) * (2.0 / F) ** 0.5),
        }
    _B_in = _B_setup()

    return {
        "A_x": _A_in["x"],
        "A_wqkv": _A_in["wqkv"],
        "A_wo": _A_in["wo"],
        "B_x": _B_in["x"],
        "B_w1": _B_in["w1"],
        "B_w3": _B_in["w3"],
        "B_w2": _B_in["w2"],
    }

def reference(A_x, A_wqkv, A_wo, B_x, B_w1, B_w3, B_w2):
    def _A_ref(x, wqkv, wo):
        B, S, D = x.shape
        H = 32; Dh = D // H
        qkv = (lambda x, *d: x.permute(*d))((x @ wqkv).reshape(B, S, 3, H, Dh), 2, 0, 3, 1, 4)
        q, k, v = qkv[0], qkv[1], qkv[2]
        scale = Dh ** -0.5
        scores = torch.einsum("bhqd,bhkd->bhqk", q, k) * scale
        p = _softmax(scores, axis=-1)
        o = torch.einsum("bhqk,bhkd->bhqd", p, v)
        return (lambda x, *d: x.permute(*d))(o, 0, 2, 1, 3).reshape(B, S, D) @ wo

    def _B_ref(x, w1, w3, w2):
        gate = torch.einsum("bsd,df->bsf", x, w1)
        up = torch.einsum("bsd,df->bsf", x, w3)
        h = _silu(gate) * up
        out = torch.einsum("bsf,fd->bsd", h, w2)
        return out

    x = A_x
    x = x + _A_ref(_layernorm(x, axis=-1), A_wqkv, A_wo)
    x = x + _B_ref(_layernorm(x, axis=-1), B_w1, B_w3, B_w2)
    x = x + _A_ref(_layernorm(x, axis=-1), A_wqkv, A_wo)
    x = x + _B_ref(_layernorm(x, axis=-1), B_w1, B_w3, B_w2)
    return x
```

```python
class Em:
    def __init__(self):
        self.L = []
        self.vm = []
        self.vm_done = 0
        self.lg = []
        self.lg_done = 0

    def __call__(self, s):
        for line in s.split("\n"):
            line = line.strip()
            if line:
                self.L.append(line if line.endswith(":") else "    " + line)

    def label(self, s):
        self.L.append(s + ":")

    def raw(self, s):
        self.L.append(s)

    def vmem(self, s, tag=None):
        self(s)
        self.vm.append(tag)

    def _last(self, lst, tags):
        idx = -1
        for i, t in enumerate(lst):
            if t in tags:
                idx = i
        return idx

    def vm_need(self, *tags):
        idx = self._last(self.vm, tags)
        if idx < self.vm_done:
            return None
        n = len(self.vm) - 1 - idx
        n = min(n, 63)
        self.vm_done = max(self.vm_done, len(self.vm) - n)
        return n

    def lg_need(self, *tags):
        idx = self._last(self.lg, tags)
        if idx < self.lg_done:
            return None
        n = len(self.lg) - 1 - idx
        n = min(n, 15)
        self.lg_done = max(self.lg_done, len(self.lg) - n)
        return n

    def wait(self, vm=(), lg=()):
        a = self.vm_need(*vm) if vm else None
        b = self.lg_need(*lg) if lg else None
        parts = []
        if a is not None:
            parts.append(f"vmcnt({a})")
        if b is not None:
            parts.append(f"lgkmcnt({b})")
        if parts:
            self("s_waitcnt " + " ".join(parts))
            return True
        return False

    def wait_all(self, vm=True, lg=True):
        parts = []
        if vm:
            parts.append("vmcnt(0)")
            self.vm_done = len(self.vm)
        if lg:
            parts.append("lgkmcnt(0)")
            self.lg_done = len(self.lg)
        self("s_waitcnt " + " ".join(parts))

    def lds(self, s, tag=None):
        self(s)
        self.lg.append(tag)

    def reset_counters(self):
        self.vm = []
        self.vm_done = 0
        self.lg = []
        self.lg_done = 0

    def text(self):
        return "\n".join(self.L) + "\n"


def vr(b, n=1, k="v"):
    return f"{k}{b}" if n == 1 else f"{k}[{b}:{b+n-1}]"


def ar(b, n=1):
    return vr(b, n, "a")


def sr(b, n=1):
    return vr(b, n, "s")
```

```python
import sys, math, struct
from emit import Em, vr, ar, sr

NAME = "interleave_layers__softmax_full_mha__glu_gated_swiglu__prompt"
MB = 1 << 20
WS_SIZE = 0x10000000
WS_XA = 0
WS_XB = 2 * MB
WS_STA = 4 * MB
WS_STB = 4 * MB + 128 * 1024
WS_Q = 5 * MB
WS_KV = 7 * MB
WS_O = 11 * MB
WS_H = 13 * MB
WS_WQKV = 20 * MB
WS_W13 = 22 * MB
WS_WO = 26 * MB
WS_W2 = 27 * MB
NA = 4
LOG2E = 1.4426950408889634
EPS = 1e-5

CFG = dict(attn_rowpart=True, st="", D1=3, D3=3, D4=3, D5=3)


def f32(x):
    return "0x%08x" % struct.unpack("<I", struct.pack("<f", x))[0]


def kdesc(name, nv=512, ao=256, ns=96):
    return f""".section .rodata,"a"
.p2align 6
.amdhsa_kernel {name}
  .amdhsa_next_free_vgpr {nv}
  .amdhsa_next_free_sgpr {ns}
  .amdhsa_accum_offset {ao}
  .amdhsa_group_segment_fixed_size 0
  .amdhsa_kernarg_size 80
  .amdhsa_user_sgpr_count 2
  .amdhsa_user_sgpr_kernarg_segment_ptr 1
  .amdhsa_system_sgpr_workgroup_id_x 1
.end_amdhsa_kernel
.text
"""


def head(e, name, extra_loads=""):
    e.raw(f".globl {name}\n.p2align 8\n.type {name},@function")
    e.label(name)
    e.reset_counters()
    e(f"""s_cmp_ge_u32 s2, 256
    s_cbranch_scc1 {name}_end
    s_load_dwordx2 s[4:5], s[0:1], 72
    {extra_loads}
    v_lshrrev_b32 v2, 6, v0
    v_and_b32 v0, 63, v0
    v_readfirstlane_b32 s20, v2
    v_lshlrev_b32 v1, 4, v0
    s_and_b32 s21, s2, 7
    s_lshr_b32 s22, s2, 3
    s_mov_b32 s6, {WS_SIZE}
    s_mov_b32 s7, 0x20000""")


def tail(e, name):
    e.label(f"{name}_end")
    e("s_endpgm")


def gen_p0(e, name):
    head(e, name, """s_load_dwordx4 s[40:43], s[0:1], 0
    s_load_dwordx2 s[44:45], s[0:1], 16
    s_load_dwordx4 s[48:51], s[0:1], 32
    s_load_dwordx2 s[52:53], s[0:1], 48""")
    st = CFG["st"]
    e(f"""s_mov_b32 s11, 0x20000
    s_and_b32 s23, s20, 1
    s_lshl_b32 s24, s2, 1
    s_add_u32 s24, s24, s23
    s_waitcnt lgkmcnt(0)
    s_cmp_ge_u32 s20, 2
    s_cbranch_scc1 {name}_x
    s_cmp_lt_u32 s24, 96
    s_cbranch_scc1 {name}_qkv
    s_cmp_lt_u32 s24, 320
    s_cbranch_scc1 {name}_w13
    s_cmp_lt_u32 s24, 352
    s_cbranch_scc1 {name}_wo
    s_cmp_lt_u32 s24, 464
    s_cbranch_scc0 {name}_end""")
    e(f"""s_sub_u32 s24, s24, 352
    s_and_b32 s25, s24, 7
    s_lshr_b32 s26, s24, 3
    s_mov_b32 s8, s52
    s_mov_b32 s9, s53
    s_mov_b32 s10, {1792*512*2}
    s_mul_i32 s30, s25, {224*1024}
    s_add_u32 s30, s30, {WS_W2}
    s_branch {name}_t16""")
    e.label(f"{name}_wo")
    e(f"""s_sub_u32 s24, s24, 320
    s_lshr_b32 s25, s24, 2
    s_and_b32 s26, s24, 3
    s_mov_b32 s8, s44
    s_mov_b32 s9, s45
    s_mov_b32 s10, {512*512*2}
    s_mul_i32 s30, s25, {64*1024}
    s_add_u32 s30, s30, {WS_WO}""")
    e.label(f"{name}_t16")
    e(f"""s_lshl_b32 s31, s26, 14
    s_add_u32 s30, s30, s31
    s_mov_b32 s34, 1024""")
    dma16(e)
    e(f"""v_lshrrev_b32 v4, 4, v0
    v_lshlrev_b32 v4, 10, v4
    v_bfe_u32 v5, v0, 2, 2
    v_lshl_add_u32 v4, v5, 7, v4
    v_and_b32 v5, 3, v0
    v_lshl_add_u32 v4, v5, 4, v4
    v_add_u32 v4, s35, v4
    s_waitcnt vmcnt(0)""")
    for ks in range(4):
        for t in range(4):
            u, b = t >> 1, t & 1
            r = 16 + 4 * t
            for tt in range(2):
                e(f"ds_read_b64_tr_b16 {vr(r+2*tt,2)}, v4 offset:{ks*4096+tt*512+u*64+b*8}")
        e("s_waitcnt lgkmcnt(0)")
        for t in range(4):
            e(f"buffer_store_dwordx4 {vr(16+4*t,4)}, v1, s[4:7], s30 offen offset:{t*1024} {st}")
        e("s_add_u32 s30, s30, 4096")
        e("s_waitcnt vmcnt(0)")
    e("s_endpgm")

    e.label(f"{name}_qkv")
    e(f"""s_lshr_b32 s25, s24, 2
    s_and_b32 s26, s24, 3
    s_mov_b32 s8, s42
    s_mov_b32 s9, s43
    s_mov_b32 s10, {512*1536*2}
    s_mov_b32 s34, 3072
    s_lshr_b32 s27, s25, 3
    s_lshl_b32 s28, s25, 1
    s_and_b32 s28, s28, 15
    s_mul_i32 s28, s28, {100*1024}
    s_lshl_b32 s27, s27, 10
    s_add_u32 s28, s28, s27
    s_add_u32 s28, s28, {WS_WQKV}
    v_add_u32 v8, s28, v1
    v_add_u32 v9, {100*1024}, v8
    v_mov_b32 v10, 3072
    v_mov_b32 v11, 3072
    s_branch {name}_t32""")
    e.label(f"{name}_w13")
    e(f"""s_sub_u32 s24, s24, 96
    s_mov_b32 s8, s48
    s_mov_b32 s9, s49
    s_mov_b32 s29, 0
    s_cmp_lt_u32 s24, 112
    s_cbranch_scc1 {name}_w1
    s_sub_u32 s24, s24, 112
    s_mov_b32 s8, s50
    s_mov_b32 s9, s51
    s_mov_b32 s29, 256""")
    e.label(f"{name}_w1")
    e(f"""s_lshr_b32 s25, s24, 2
    s_and_b32 s26, s24, 3
    s_mov_b32 s10, {512*1792*2}
    s_mov_b32 s34, 3584
    s_lshl_b32 s27, s25, 2
    s_add_u32 s29, s29, {WS_W13}
    v_bfe_u32 v4, v0, 4, 1
    v_lshrrev_b32 v5, 5, v0
    v_lshlrev_b32 v5, 9, v5
    v_and_b32 v6, 15, v0
    v_lshl_add_u32 v5, v6, 4, v5
    v_add_u32 v5, s29, v5
    v_add_u32 v4, s27, v4""")
    for j in range(2):
        e(f"""v_add_u32 v6, {2*j}, v4
        v_mul_u32_u24 v7, 147, v6
        v_lshrrev_b32 v7, 10, v7
        v_mul_u32_u24 v12, 7, v7
        v_sub_u32 v6, v6, v12
        v_mul_u32_u24 v7, {232*1024}, v7
        v_mul_u32_u24 v12, 33, v6
        v_cmp_gt_u32 vcc, {NA}, v6
        v_mov_b32 v13, 1024
        v_mov_b32 v14, {NA*1024}
        v_cndmask_b32 v12, v12, v6, vcc
        v_cndmask_b32 {vr(10+j)}, v13, v14, vcc
        v_lshl_add_u32 v12, v12, 10, v7
        v_add_u32 {vr(8+j)}, v12, v5""")
    e.label(f"{name}_t32")
    dma16(e)
    e(f"""v_lshrrev_b32 v4, 5, v0
    v_lshlrev_b32 v4, 10, v4
    v_bfe_u32 v5, v0, 2, 2
    v_lshl_add_u32 v4, v5, 7, v4
    v_bfe_u32 v5, v0, 4, 1
    v_lshl_add_u32 v4, v5, 5, v4
    v_and_b32 v5, 1, v0
    v_lshl_add_u32 v4, v5, 4, v4
    v_bfe_u32 v5, v0, 1, 1
    v_lshl_add_u32 v4, v5, 3, v4
    v_add_u32 v4, s35, v4
    s_lshr_b32 s27, s26, 1
    s_lshl_b32 s27, s27, 9
    s_and_b32 s28, s26, 1
    s_lshl_b32 s28, s28, 3
    s_add_u32 s27, s27, s28
    v_lshl_add_u32 v12, v10, 5, v8
    v_lshl_add_u32 v13, v11, 5, v9
    s_lshl_b32 s28, s26, 3
    v_mad_u32_u24 v8, v10, s28, v8
    v_mad_u32_u24 v9, v11, s28, v9
    v_mov_b32 v24, 0x3f803f80
    v_mov_b32 v25, 0x3f803f80
    v_mov_b32 v26, 0x3f803f80
    v_mov_b32 v27, 0x3f803f80
    s_waitcnt vmcnt(0)""")
    for ks in range(8):
        for j in range(2):
            for t in range(2):
                e(f"ds_read_b64_tr_b16 {vr(16+4*j+2*t,2)}, v4 offset:{ks*2048+t*512+j*64}")
        e("s_waitcnt lgkmcnt(0)")
        for j in range(2):
            c = "0" if ks == 0 else vr(32 + 16 * j, 16)
            e(f"v_mfma_f32_32x32x16_bf16 {vr(32+16*j,16)}, v[24:27], {vr(16+4*j,4)}, {c}")
            e(f"buffer_store_dwordx4 {vr(16+4*j,4)}, {vr(8+j)}, s[4:7], 0 offen {st}")
        for j in range(2):
            e(f"v_add_u32 {vr(8+j)}, {vr(8+j)}, {vr(10+j)}")
        e("s_waitcnt vmcnt(0)")
    e("s_nop 15")
    for j in range(2):
        a = 32 + 16 * j
        e(f"""v_cvt_pk_bf16_f32 {vr(16+2*j)}, {vr(a)}, {vr(a)}
        v_and_b32 v20, 0xffff0000, {vr(16+2*j)}
        v_sub_f32 v20, {vr(a)}, v20
        v_mov_b32 v21, 0
        v_cvt_pk_bf16_f32 {vr(17+2*j)}, v20, v21""")
    e("s_mov_b32 exec_hi, 0")
    for j in range(2):
        e(f"buffer_store_dwordx2 {vr(16+2*j,2)}, {vr(12+j)}, s[4:7], s27 offen {st}")
    e("s_endpgm")

    e.label(f"{name}_x")
    e(f"""s_mov_b32 s8, s40
    s_mov_b32 s9, s41
    s_mov_b32 s10, {2048*512*2}
    s_lshr_b32 s25, s24, 3
    s_and_b32 s26, s24, 7
    s_lshl_b32 s27, s25, 15
    s_lshl_b32 s28, s26, 7
    s_add_u32 s28, s28, s27
    s_lshl_b32 s29, s26, 12
    s_add_u32 s29, s29, s27
    v_and_b32 v4, 31, v0
    v_lshlrev_b32 v5, 10, v4
    v_lshrrev_b32 v6, 5, v0
    v_lshl_add_u32 v5, v6, 4, v5""")
    for i in range(4):
        e(f"buffer_load_dwordx4 {vr(16+4*i,4)}, v5, s[8:11], s28 offen offset:{32*i}")
    e(f"""v_mov_b32 v8, 0
    v_mov_b32 v9, 0
    v_mov_b32 v10, 0x3f803f80
    s_lshl_b32 s30, s26, 14
    s_lshl_b32 s31, s25, 8
    s_add_u32 s30, s30, s31
    s_add_u32 s30, s30, {WS_STA}
    v_lshlrev_b32 v7, 3, v4
    v_lshl_add_u32 v7, v6, 2, v7
    s_waitcnt vmcnt(0)""")
    assert WS_XA == 0
    for i in range(4):
        e(f"buffer_store_dwordx4 {vr(16+4*i,4)}, v1, s[4:7], s29 offen offset:{1024*i} {st}")
    for i in range(16):
        e(f"v_dot2c_f32_bf16 v8, {vr(16+i)}, v10")
        e(f"v_dot2c_f32_bf16 v9, {vr(16+i)}, {vr(16+i)}")
    e(f"""s_nop 3
    v_permlane32_swap_b32 v8, v9
    s_nop 1
    v_add_f32 v8, v8, v9
    buffer_store_dword v8, v7, s[4:7], s30 offen {st}""")
    tail(e, name)


def dma16(e):
    e(f"""v_lshrrev_b32 v2, 3, v0
    v_mul_lo_u32 v2, v2, s34
    v_and_b32 v3, 7, v0
    v_lshl_add_u32 v2, v3, 4, v2
    s_lshl_b32 s36, s34, 7
    s_mul_i32 s36, s36, s26
    s_lshl_b32 s37, s25, 7
    s_add_u32 s36, s36, s37
    s_lshl_b32 s37, s34, 3
    s_lshl_b32 s35, s23, 14""")
    for i in range(16):
        e(f"s_add_u32 m0, s35, {i*1024}")
        e("s_nop 0")
        e("buffer_load_dwordx4 v2, s[8:11], s36 offen lds")
        e("s_add_u32 s36, s36, s37")


class Stream:
    def __init__(self, e, chunks, R, sW, sM, sT, vOff):
        self.e, self.chunks, self.R = e, chunks, R
        self.sW, self.sM, self.sT, self.vOff = sW, sM, sT, vOff
        self.first = {f0: c for c, (f0, n) in enumerate(chunks)}
        self.safe_below = R

    def dma_ops(self, c):
        f0, n = self.chunks[c]
        ops = []
        for i in range(n):
            def op(i=i):
                e = self.e
                assert f0 + 4 * n <= self.safe_below, ("ring WAR", c, f0, n, self.safe_below)
                assert (f0 % self.R) + 4 * n <= self.R, ("chunk wraps ring", c)
                if i == 0:
                    e(f"s_mul_i32 {sr(self.sT)}, s20, {n*1024}")
                    e(f"s_add_u32 m0, {sr(self.sT)}, {(f0 % self.R)*1024}")
                    e(f"s_add_u32 {sr(self.sT)}, {sr(self.sT)}, {sr(self.sW)}")
                    if f0:
                        e(f"s_add_u32 {sr(self.sT)}, {sr(self.sT)}, {f0*1024}")
                e.vmem(f"buffer_load_dwordx4 {vr(self.vOff)}, s[4:7], {sr(self.sT)} offen offset:{i*1024} lds", ("W", c))
            ops.append(op)
        return ops


def run_stream(e, S, mf, WB, NB, PD, vL, fill, pre=None):
    n = len(mf)
    assert NB >= PD + 1
    for i in range(-PD, n):
        j = i + PD
        if i >= 0:
            fmt, tags = mf[i]
            if pre:
                pre(i)
            e.wait(vm=tags, lg=[("w", i)])
            e(fmt.format(w=vr(WB + 4 * (i % NB), 4)))
        if j < n:
            if j in S.first:
                e.wait(vm=[("W", S.first[j])])
                e("s_barrier")
                S.safe_below = max(S.safe_below, S.R + max(i, -1) + 1)
            slot = j % S.R
            e.lds(f"ds_read_b128 {vr(WB+4*(j % NB),4)}, {vr(vL[slot//64])} offset:{(slot % 64)*1024}", ("w", j))
        if i >= 0:
            fill(i)


def lds_bases(e, v0, n):
    for k in range(1, n):
        e(f"v_add_u32 {vr(v0+k-1)}, {k*65536}, v1")
    return [1] + [v0 + k - 1 for k in range(1, n)]


def stats_load(e, sBase, vT):
    e(f"""v_and_b32 v2, 31, v0
    v_lshlrev_b32 v2, 3, v2
    v_lshrrev_b32 v3, 5, v0
    v_lshl_add_u32 v2, v3, 16, v2""")
    for i in range(4):
        if i:
            e(f"s_add_u32 {sr(sBase)}, {sr(sBase)}, 16384")
        e.vmem(f"buffer_load_dwordx2 {vr(vT+2*i,2)}, v2, s[4:7], {sr(sBase)} offen", "st")


def stats_ops(vT, vX, vR, vV):
    a, b = vT, vT + 1
    return [
        f"v_add_f32 {vr(a)}, {vr(a)}, {vr(vT+2)}",
        f"v_add_f32 {vr(b)}, {vr(b)}, {vr(vT+3)}",
        f"v_add_f32 {vr(vT+4)}, {vr(vT+4)}, {vr(vT+6)}",
        f"v_add_f32 {vr(vT+5)}, {vr(vT+5)}, {vr(vT+7)}",
        f"v_add_f32 {vr(a)}, {vr(a)}, {vr(vT+4)}",
        f"v_add_f32 {vr(b)}, {vr(b)}, {vr(vT+5)}",
        f"v_mov_b32 {vr(vT+2)}, {vr(a)}",
        f"v_mov_b32 {vr(vT+3)}, {vr(b)}",
        "s_nop 1",
        f"v_permlane32_swap_b32 {vr(a)}, {vr(vT+2)}",
        f"v_permlane32_swap_b32 {vr(b)}, {vr(vT+3)}",
        "s_nop 1",
        f"v_add_f32 {vr(a)}, {vr(a)}, {vr(vT+2)}",
        f"v_add_f32 {vr(b)}, {vr(b)}, {vr(vT+3)}",
        f"v_mul_f32 {vr(a)}, {f32(-1.0/512)}, {vr(a)}",
        f"v_mul_f32 {vr(b)}, {f32(1.0/512)}, {vr(b)}",
        f"v_fma_f32 {vr(b)}, -{vr(a)}, {vr(a)}, {vr(b)}",
        f"v_max_f32 {vr(b)}, 0, {vr(b)}",
        f"v_add_f32 {vr(vV)}, {f32(EPS)}, {vr(b)}",
        f"v_rsq_f32 {vr(vR)}, {vr(vV)}",
        f"v_mov_b32 {vr(vT+2)}, 0",
        f"v_cvt_pk_bf16_f32 {vr(vX+1)}, {vr(a)}, {vr(vT+2)}",
        f"v_lshlrev_b32 {vr(vT+3)}, 16, {vr(vX+1)}",
        f"v_sub_f32 {vr(vT+3)}, {vr(a)}, {vr(vT+3)}",
        f"v_cvt_pk_bf16_f32 {vr(vX)}, {vr(a)}, {vr(vT+3)}",
        f"v_mov_b32 {vr(vX+3)}, {vr(vX+1)}",
        f"v_mov_b32 {vr(vX+2)}, {vr(vX)}",
    ]


class Filler:
    def __init__(self, budget):
        self.q = []
        self.budget = budget

    def add(self, slot, cost, fn):
        self.q.append((slot, cost, fn))

    def __call__(self, i, budget=None):
        b = self.budget if budget is None else budget
        while self.q and self.q[0][0] <= i and (b >= self.q[0][1] or b == self.budget):
            s, c, fn = self.q.pop(0)
            fn()
            b -= c
            if b <= 0:
                break

    def flush(self):
        while self.q:
            self.q.pop(0)[2]()


def cost_of(s):
    if s.startswith(("v_exp", "v_rcp", "v_rsq")):
        return 8
    if s.startswith("s_nop"):
        return 4 * (int(s.split()[1]) + 1)
    return 4


def gen_p1(e, name):
    head(e, name)
    st = CFG["st"]
    D = CFG["D1"]
    e(f"""s_lshr_b32 s23, s22, 4
    s_lshl_b32 s24, s21, 1
    s_add_u32 s23, s23, s24
    s_lshl_b32 s23, s23, 2
    s_add_u32 s23, s23, s20
    s_and_b32 s24, s22, 15
    s_mul_i32 s25, s24, {100*1024}
    s_add_u32 s25, s25, {WS_WQKV}
    s_lshl_b32 s26, s23, 15
    s_add_u32 s26, s26, {WS_XA}
    s_lshl_b32 s27, s23, 8
    s_add_u32 s27, s27, {WS_STA}""")
    vL = lds_bases(e, 4, 2)
    e("s_waitcnt lgkmcnt(0)")
    vT, vX, vR, vV = 8, 16, 20, 21
    ACC, WB, NB, PD = 32, 96, 8, 5
    chunks = [(12 * c, 3) for c in range(8)] + [(96, 1)]
    S = Stream(e, chunks, 100, 25, None, 28, 1)

    def x_ops(c):
        ops = []
        for i in range(4):
            def op(i=i):
                if i == 0 and c:
                    e("s_add_u32 s26, s26, 4096")
                e.vmem(f"buffer_load_dwordx4 {ar(4*(4*c+i),4)}, v1, s[4:7], s26 offen offset:{i*1024}", ("x", 4 * c + i))
            ops.append(op)
        return ops

    def chunk_ops(c):
        return S.dma_ops(c) + (x_ops(c) if c < 8 else [])
    for c in range(D):
        for op in chunk_ops(c):
            op()
        if c == 0:
            stats_load(e, 27, vT)
    F = Filler(16)
    mf = []
    for ks in range(33):
        x = ar(4 * ks, 4) if ks < 32 else vr(vX, 4)
        tags = [("x", ks)] if ks < 32 else []
        for t in range(3):
            acc = vr(ACC + 16 * t, 16)
            c = "0" if ks == 0 else acc
            if t < 2:
                mf.append((f"v_mfma_f32_32x32x16_bf16 {acc}, {{w}}, {x}, {c}", tags))
            else:
                mf.append((f"v_mfma_f32_32x32x16_bf16 {acc}, {x}, {{w}}, {c}", tags))
    for c in range(D, 9):
        for op in chunk_ops(c):
            F.add(12 * (c - D), 16, op)
    G = Filler(12)
    G.add(6, 4, lambda: e.wait(vm=["st"]))
    for s in stats_ops(vT, vX, vR, vV):
        G.add(6, cost_of(s), lambda s=s: e(s))
    SCR = 100 * 1024
    RV = 128
    G.add(6, 4, lambda: e(f"s_lshl_b32 s29, s20, 8"))
    G.add(6, 4, lambda: e(f"s_add_u32 s29, s29, {SCR}"))
    G.add(6, 4, lambda: e(f"v_lshl_add_u32 v22, v0, 2, s29"))
    G.add(6, 4, lambda: e.lds(f"ds_write_b32 v22, {vr(vR)}", "rw"))
    G.add(6, 4, lambda: e(f"v_lshrrev_b32 v22, 5, v0"))
    G.add(6, 4, lambda: e(f"v_lshl_add_u32 v22, v22, 4, s29"))
    for a in range(4):
        G.add(6, 4, lambda a=a: e.lds(f"ds_read_b128 {vr(RV+4*a,4)}, v22 offset:{32*a}", "rv"))
    G.add(6, 4, lambda: e(f"v_mul_f32 v23, {f32(0.25*LOG2E)}, {vr(vR)}"))
    for s in f"""s_lshl_b32 s30, s24, 7
    s_add_u32 s30, s30, s23
    s_lshl_b32 s31, s30, 11
    s_lshl_b32 s30, s30, 10
    s_add_u32 s30, s30, {WS_Q}
    s_add_u32 s31, s31, {WS_KV}
    s_add_u32 s32, s30, 65536
    s_add_u32 s33, s31, 131072
    v_and_b32 v24, 0x33, v0
    v_bfe_u32 v2, v0, 2, 1
    v_lshl_add_u32 v24, v2, 3, v24
    v_bfe_u32 v2, v0, 3, 1
    v_lshl_add_u32 v24, v2, 2, v24
    v_lshlrev_b32 v24, 4, v24
    v_and_b32 v25, 15, v0
    v_lshlrev_b32 v25, 4, v25
    v_lshrrev_b32 v2, 5, v0
    v_lshl_add_u32 v25, v2, 8, v25
    v_bfe_u32 v2, v0, 4, 1
    v_lshl_add_u32 v25, v2, 17, v25""".split("\n"):
        G.add(6, 4, lambda s=s: e(s))

    def fill(i):
        F(i)
        G(i)
        if i == 90:
            F.flush()
            G.flush()
    run_stream(e, S, mf, WB, NB, PD, vL, fill)
    e.wait(lg=["rv"])
    e("s_nop 9")
    P = 144
    for t, mul in ((0, "v23"), (1, vr(vR))):
        a = ACC + 16 * t
        for r in range(16):
            e(f"v_mul_f32 {vr(a+r)}, {mul}, {vr(a+r)}")
        for r in range(8):
            e(f"v_cvt_pk_bf16_f32 {vr(P+8*t+r)}, {vr(a+2*r)}, {vr(a+2*r+1)}")
        if t == 0:
            e.vmem(f"buffer_store_dwordx4 {vr(P,4)}, v1, s[4:7], s30 offen {st}")
            e.vmem(f"buffer_store_dwordx4 {vr(P+4,4)}, v1, s[4:7], s32 offen {st}")
        else:
            e.vmem(f"buffer_store_dwordx4 {vr(P+8,4)}, v24, s[4:7], s31 offen {st}")
            e.vmem(f"buffer_store_dwordx4 {vr(P+12,4)}, v24, s[4:7], s33 offen {st}")
    a = ACC + 32
    for r in range(16):
        e(f"v_mul_f32 {vr(a+r)}, {vr(RV+r)}, {vr(a+r)}")
    for r in range(8):
        e(f"v_cvt_pk_bf16_f32 {vr(P+16+r)}, {vr(a+2*r)}, {vr(a+2*r+1)}")
    e.vmem(f"buffer_store_dwordx4 {vr(P+16,4)}, v25, s[4:7], s31 offen offset:1024 {st}")
    e.vmem(f"buffer_store_dwordx4 {vr(P+20,4)}, v25, s[4:7], s31 offen offset:1536 {st}")
    tail(e, name)


def gen_p2(e, name):
    head(e, name)
    st = CFG["st"]
    if CFG["attn_rowpart"]:
        e("s_mov_b32 s23, s22\ns_mov_b32 s24, s21")
    else:
        e("""s_and_b32 s23, s22, 3
        s_lshl_b32 s24, s21, 2
        s_add_u32 s23, s23, s24
        s_lshr_b32 s24, s22, 2""")
    e(f"""s_lshl_b32 s24, s24, 3
    s_lshl_b32 s25, s20, 1
    s_add_u32 s24, s24, s25
    s_lshl_b32 s25, s23, 6
    s_add_u32 s25, s25, s24
    s_lshl_b32 s25, s25, 10
    s_add_u32 s25, s25, {WS_Q}
    s_lshl_b32 s26, s23, 17
    s_add_u32 s26, s26, {WS_KV}
    s_lshl_b32 s27, s20, 11
    s_add_u32 s26, s26, s27
    s_lshl_b32 s28, s24, 15
    s_lshl_b32 s29, s23, 10
    s_add_u32 s28, s28, s29
    s_add_u32 s28, s28, {WS_O}
    s_add_u32 s29, s28, 32768
    s_mov_b32 s40, 0x0000ffff
    s_mov_b32 s41, 0x0000ffff""")
    Q, KB, VB, SB, OB, IDX = 8, 16, 24, 48, 80, 3
    vK = [1, 4]
    vV = [5, 6]
    e(f"""v_add_u32 v4, 65536, v1
    v_and_b32 v5, 15, v0
    v_lshlrev_b32 v5, 4, v5
    v_lshrrev_b32 v2, 5, v0
    v_lshl_add_u32 v5, v2, 8, v5
    v_add_u32 v5, 1024, v5
    v_add_u32 v6, 65536, v5
    s_waitcnt lgkmcnt(0)""")

    def dma_pair(i):
        e(f"s_add_u32 m0, s27, {i*8192}")
        if i:
            e("s_add_u32 s26, s26, 8192")
        else:
            e("s_nop 0")
        e.vmem("buffer_load_dwordx4 v1, s[4:7], s26 offen lds", ("kv", i))
        e.vmem("buffer_load_dwordx4 v1, s[4:7], s26 offen offset:1024 lds", ("kv", i))
    dma_pair(0)
    e.vmem(f"buffer_load_dwordx4 {vr(Q,4)}, v1, s[4:7], s25 offen", "q")
    e.vmem(f"buffer_load_dwordx4 {vr(Q+4,4)}, v1, s[4:7], s25 offen offset:1024", "q")
    NPRE = CFG.get("attn_pre", 4)
    for i in range(1, NPRE):
        dma_pair(i)
    e(f"v_mov_b32 {vr(IDX)}, 0xdddddddd")
    for r in range(16):
        e(f"v_mov_b32 {vr(VB+r)}, 0x3f803f80")
    for r in range(32):
        e(f"v_mov_b32 {vr(OB+r)}, 0")
    bounds = CFG.get("attn_bounds", [0, 4, 8, 16, 32])
    ends = bounds[1:] + [64]
    ready = [0]

    def need(kt):
        while kt >= ready[0]:
            c = bounds.index(ready[0])
            e.wait(vm=[("kv", ends[c] // 4 - 1)])
            e("s_barrier")
            ready[0] = ends[c]

    def ldK(kt):
        need(kt)
        e.lds(f"ds_read_b128 {vr(KB+4*(kt & 1),4)}, {vr(vK[kt >> 5])} offset:{(kt & 31)*2048}", ("k", kt))

    def ldV(kt, f):
        e.lds(f"ds_read_b128 {vr(VB+8*(kt & 1)+4*f,4)}, {vr(vV[kt >> 5])} offset:{(kt & 31)*2048+512*f}", ("v", kt))

    def QK(n):
        kt, s = n >> 1, n & 1
        e.wait(lg=[("k", kt)])
        e(f"v_mfma_f32_32x32x16_bf16 {vr(SB+16*(n & 1),16)}, {vr(KB+4*(kt & 1),4)}, {vr(Q+4*s,4)}, 0")

    def SM(n, f):
        kt, s = n >> 1, n & 1
        e.wait(lg=[("v", kt)])
        e(f"v_smfmac_f32_32x32x32_bf16 {vr(OB+16*s,16)}, {vr(VB+8*(kt & 1)+4*f,4)}, {vr(SB+16*(n & 1)+8*f,8)}, {vr(IDX)}")
    ldK(0)
    ldK(1)
    e("s_mov_b64 exec, s[40:41]")
    ldV(0, 0)
    ldV(0, 1)
    e("s_mov_b64 exec, -1")
    e.wait(vm=["q"])
    QK(0)
    e("s_nop 11")
    rate = CFG.get("attn_rate", 4)
    nxt = NPRE
    for n in range(128):
        kt, s = n >> 1, n & 1
        S = SB + 16 * (n & 1)
        ex = [f"v_exp_f32 {vr(S+r)}, {vr(S+r)}" for r in range(16)]
        e(ex[0]); e(ex[1])
        if n:
            SM(n - 1, 1)
        e(ex[2])
        if s == 0 and kt + 1 < 64:
            need(kt + 1)
            e("s_mov_b64 exec, s[40:41]")
            ldV(kt + 1, 0)
            ldV(kt + 1, 1)
            e("s_mov_b64 exec, -1")
        if s == 1 and kt + 2 < 64:
            ldK(kt + 2)
        e(ex[3]); e(ex[4])
        if n + 1 < 128:
            QK(n + 1)
        for r in range(5, 10):
            e(ex[r])
            if r == 6 and nxt < 16 and n % rate == 0:
                dma_pair(nxt)
                nxt += 1
        SM(n, 0)
        for r in range(10, 16):
            e(ex[r])
    assert nxt == 16
    e("s_nop 1")
    SM(127, 1)
    e("s_nop 11")
    e(f"""s_mov_b32 s42, {f32(2.0**-30)}
    s_mov_b32 s43, {f32(2.0**60)}
    s_mov_b64 s[44:45], 0""")
    for s in range(2):
        O = OB + 16 * s
        e(f"v_add_f32 v2, abs({vr(O)}), abs({vr(O+1)})")
        for r in range(2, 8):
            e(f"v_add_f32 v2, v2, abs({vr(O+r)})")
        e(f"""
        v_cmp_nle_f32 vcc, s42, {vr(O+8)}
        s_or_b64 s[44:45], s[44:45], vcc
        v_cmp_nge_f32 vcc, s43, {vr(O+8)}
        s_or_b64 s[44:45], s[44:45], vcc
        v_cmp_nge_f32 vcc, {f32(2.0**126)}, v2
        s_or_b64 s[44:45], s[44:45], vcc""")
    e(f"s_cbranch_scc1 {name}_slow")
    e.label(f"{name}_fin")
    for s in range(2):
        O = OB + 16 * s
        e(f"v_rcp_f32 {vr(O+8)}, {vr(O+8)}")
    for s in range(2):
        O = OB + 16 * s
        for r in range(8):
            e(f"v_mul_f32 {vr(O+r)}, {vr(O+8)}, {vr(O+r)}")
        for r in range(4):
            e(f"v_cvt_pk_bf16_f32 {vr(O+12+r)}, {vr(O+2*r)}, {vr(O+2*r+1)}")
        e(f"buffer_store_dwordx4 {vr(O+12,4)}, v1, s[4:7], {sr(28+s)} offen {st}")
    e("s_endpgm")
    e.label(f"{name}_slow")
    CB = 112
    for s in range(2):
        O = OB + 16 * s
        e(f"""v_mov_b32 v7, v1
        v_mov_b32 v2, 0xff7fffff
        s_mov_b32 s46, 0""")
        e.label(f"{name}_slow_a{s}")
        e(f"""ds_read_b128 {vr(KB,4)}, v7
        v_add_u32 v7, 2048, v7
        s_waitcnt lgkmcnt(0)
        v_mfma_f32_32x32x16_bf16 {vr(SB,16)}, {vr(KB,4)}, {vr(Q+4*s,4)}, 0
        s_nop 15""")
        for r in range(8):
            e(f"v_max3_f32 v2, v2, {vr(SB+2*r)}, {vr(SB+2*r+1)}")
        e(f"""s_add_u32 s46, s46, 1
        s_cmp_lt_u32 s46, 64
        s_cbranch_scc1 {name}_slow_a{s}
        v_mov_b32 v7, v2
        s_nop 1
        v_permlane32_swap_b32 v2, v7
        s_nop 1
        v_max_f32 v2, v2, v7""")
        for r in range(16):
            e(f"v_sub_f32 {vr(CB+r)}, 0, v2")
            e(f"v_mov_b32 {vr(O+r)}, 0")
        e(f"""v_mov_b32 v7, v1
        v_mov_b32 v2, v5
        s_mov_b32 s46, 0""")
        e.label(f"{name}_slow_b{s}")
        e(f"""ds_read_b128 {vr(KB,4)}, v7
        s_mov_b64 exec, s[40:41]
        ds_read_b128 {vr(VB,4)}, v2
        ds_read_b128 {vr(VB+4,4)}, v2 offset:512
        s_mov_b64 exec, -1
        v_add_u32 v7, 2048, v7
        v_add_u32 v2, 2048, v2
        s_waitcnt lgkmcnt(0)
        v_mfma_f32_32x32x16_bf16 {vr(SB,16)}, {vr(KB,4)}, {vr(Q+4*s,4)}, {vr(CB,16)}
        s_nop 15""")
        for r in range(16):
            e(f"v_exp_f32 {vr(SB+r)}, {vr(SB+r)}")
        e(f"""s_nop 1
        v_smfmac_f32_32x32x32_bf16 {vr(O,16)}, {vr(VB,4)}, {vr(SB,8)}, {vr(IDX)}
        v_smfmac_f32_32x32x32_bf16 {vr(O,16)}, {vr(VB+4,4)}, {vr(SB+8,8)}, {vr(IDX)}
        s_nop 15
        s_add_u32 s46, s46, 1
        s_cmp_lt_u32 s46, 64
        s_cbranch_scc1 {name}_slow_b{s}""")
    e(f"s_branch {name}_fin")
    tail(e, name)


def gen_p35(e, name, K, wsAct, wsW, wsRes, wsOut, wsSt, D, final=False):
    head(e, name, "s_load_dwordx2 s[8:9], s[0:1], 56" if final else "")
    st = CFG["st"]
    KS = K // 32
    NC = KS // 4
    e(f"""s_lshr_b32 s23, s22, 3
    s_lshl_b32 s24, s21, 2
    s_add_u32 s23, s23, s24
    s_lshl_b32 s23, s23, 2
    s_add_u32 s23, s23, s20
    s_lshr_b32 s34, s23, 1
    s_and_b32 s35, s23, 1
    s_lshl_b32 s35, s35, 8
    s_and_b32 s24, s22, 7
    s_mul_i32 s25, s24, {KS*4*1024}
    s_add_u32 s25, s25, {wsW}
    s_mul_i32 s26, s34, {K*64}
    s_add_u32 s26, s26, s35
    s_add_u32 s26, s26, {wsAct}
    s_lshl_b32 s27, s34, 15
    s_lshl_b32 s29, s24, 12
    s_add_u32 s27, s27, s29
    s_add_u32 s27, s27, s35
    s_add_u32 s30, s27, {wsRes}
    v_and_b32 v2, 15, v0
    v_lshrrev_b32 v3, 4, v0
    v_lshlrev_b32 v6, 4, v2
    v_lshl_add_u32 v6, v3, 9, v6""")
    R = min(KS * 4, 160)
    vL = lds_bases(e, 4, (R + 63) // 64)
    e("s_waitcnt lgkmcnt(0)")
    ACC, RS, WB, NB, PD = 16, 8, 48, 12, 8
    chunks = [(16 * c, 4) for c in range(NC)]
    S = Stream(e, chunks, R, 25, None, 28, 1)

    def x_ops(c):
        ops = []
        for i in range(4):
            def op(i=i):
                ks = 4 * c + i
                if (i & 1) == 0 and ks:
                    e("s_add_u32 s26, s26, 4096")
                e.vmem(f"buffer_load_dwordx4 {ar(4*ks,4)}, v6, s[4:7], s26 offen offset:{(i & 1)*2048}", ("x", ks))
            ops.append(op)
        return ops

    def chunk_ops(c):
        return S.dma_ops(c) + x_ops(c)
    for u in range(2):
        e.vmem(f"buffer_load_dwordx4 {vr(RS+4*u,4)}, v6, s[4:7], s30 offen offset:{2048*u}", "res")
    for c in range(min(D, NC)):
        for op in chunk_ops(c):
            op()
    if final:
        e(f"""s_mov_b32 s10, {2048*512*2}
        s_mov_b32 s11, 0x20000
        s_lshl_b32 s31, s23, 14
        s_lshl_b32 s29, s24, 7
        s_add_u32 s31, s31, s29
        v_lshlrev_b32 v7, 10, v2
        v_lshl_add_u32 v7, v3, 4, v7""")
    else:
        e(f"""s_add_u32 s31, s27, {wsOut}
        s_lshl_b32 s32, s24, 14
        s_lshl_b32 s29, s23, 7
        s_add_u32 s32, s32, s29
        s_add_u32 s32, s32, {wsSt}
        v_lshlrev_b32 v7, 3, v2
        v_lshrrev_b32 v3, 5, v0
        v_lshl_add_u32 v7, v3, 2, v7""")
    e.wait(vm=["res"])
    for r in range(8):
        e(f"v_lshlrev_b32 {vr(ACC+2*r)}, 16, {vr(RS+r)}")
        e(f"v_and_b32 {vr(ACC+2*r+1)}, 0xffff0000, {vr(RS+r)}")
    mf = []
    for ks in range(KS):
        for t in range(4):
            acc = vr(ACC + 4 * t, 4)
            mf.append((f"v_mfma_f32_16x16x32_bf16 {acc}, {{w}}, {ar(4*ks,4)}, {acc}", [("x", ks)]))
    F = Filler(4)
    for c in range(D, NC):
        for k, op in enumerate(chunk_ops(c)):
            F.add(16 * (c - D) + 2 * k, 4, op)
    run_stream(e, S, mf, WB, NB, PD, vL, F)
    assert not F.q
    e("s_nop 7")
    P = 32
    for r in range(8):
        e(f"v_cvt_pk_bf16_f32 {vr(P+r)}, {vr(ACC+2*r)}, {vr(ACC+2*r+1)}")
    if final:
        for u in range(2):
            e.vmem(f"buffer_store_dwordx4 {vr(P+4*u,4)}, v7, s[8:11], s31 offen offset:{64*u}")
    else:
        for u in range(2):
            e.vmem(f"buffer_store_dwordx4 {vr(P+4*u,4)}, v6, s[4:7], s31 offen offset:{2048*u} {st}")
        e(f"v_add_f32 v8, {vr(ACC)}, {vr(ACC+1)}")
        e(f"v_mul_f32 v9, {vr(ACC)}, {vr(ACC)}")
        e(f"v_fmac_f32 v9, {vr(ACC+1)}, {vr(ACC+1)}")
        for r in range(2, 16):
            e(f"v_add_f32 v8, v8, {vr(ACC+r)}")
            e(f"v_fmac_f32 v9, {vr(ACC+r)}, {vr(ACC+r)}")
        e(f"""s_nop 1
        v_permlane32_swap_b32 v8, v9
        s_nop 1
        v_add_f32 v8, v8, v9
        v_mov_b32 v9, v8
        s_nop 1
        v_permlane16_swap_b32 v8, v9
        s_nop 1
        v_add_f32 v8, v8, v9""")
        e.vmem(f"buffer_store_dword v8, v7, s[4:7], s32 offen {st}")
    tail(e, name)


def gen_p4(e, name):
    head(e, name)
    st = CFG["st"]
    D = CFG["D4"]
    e(f"""s_lshr_b32 s23, s22, 4
    s_lshl_b32 s24, s21, 1
    s_add_u32 s23, s23, s24
    s_lshl_b32 s23, s23, 2
    s_add_u32 s23, s23, s20
    s_and_b32 s24, s22, 15
    s_mul_i32 s25, s24, {232*1024}
    s_add_u32 s25, s25, {WS_W13}
    s_lshl_b32 s26, s23, 15
    s_add_u32 s26, s26, {WS_XB}
    s_lshl_b32 s27, s23, 8
    s_add_u32 s27, s27, {WS_STB}
    s_mul_i32 s30, s23, {1792*64}
    s_mul_i32 s31, s24, {7*1024}
    s_add_u32 s30, s30, s31
    s_add_u32 s30, s30, {WS_H}
    s_add_u32 s31, s30, 4096""")
    R = 160
    vL = lds_bases(e, 4, 3)
    e("s_waitcnt lgkmcnt(0)")
    vT, vX, vR, vV, vC = 8, 16, 20, 21, 22
    ACC, WB, NB, PD = 32, 144, 8, 5
    TMP, PK = 176, 192
    assert NA == 4
    chunks = [(16 * c, 4) for c in range(14)] + [(224, 2)]
    S = Stream(e, chunks, R, 25, None, 28, 1)

    def x_ops(c):
        ops = []
        for i in range(4):
            def op(i=i):
                if i == 0 and c:
                    e("s_add_u32 s26, s26, 4096")
                e.vmem(f"buffer_load_dwordx4 {ar(4*(4*c+i),4)}, v1, s[4:7], s26 offen offset:{i*1024}", ("x", 4 * c + i))
            ops.append(op)
        return ops

    def chunk_ops(c):
        return S.dma_ops(c) + (x_ops(c) if c < 8 else [])
    for c in range(D):
        for op in chunk_ops(c):
            op()
        if c == 0:
            stats_load(e, 27, vT)
    mf = []
    done_at = {}

    def add(t, ks):
        x = ar(4 * ks, 4) if ks < 32 else vr(vX, 4)
        acc = vr(ACC + 16 * t, 16)
        c = "0" if ks == 0 else acc
        mf.append((f"v_mfma_f32_32x32x16_bf16 {acc}, {{w}}, {x}, {c}", [("x", ks)] if ks < 32 else []))
        if ks == 32:
            done_at[t] = len(mf) - 1
    for ks in range(33):
        for t in range(NA):
            add(t, ks)
    for t in range(NA, 7):
        for ks in range(33):
            add(t, ks)
    F = Filler(8)
    for c in range(D, 15):
        for k, op in enumerate(chunk_ops(c)):
            F.add(16 * (c - D) + 2 * k, 8, op)
    G = Filler(CFG.get("g4", 20))
    G.add(8, 4, lambda: e.wait(vm=["st"]))
    for s in stats_ops(vT, vX, vR, vV) + [f"v_mul_f32 {vr(vC)}, {f32(-LOG2E)}, {vr(vR)}"]:
        G.add(8, cost_of(s), lambda s=s: e(s))

    def epi(t):
        a = ACC + 16 * t
        L = []
        for hlf in range(2):
            rr = range(4 * hlf, 4 * hlf + 4)
            T = TMP + 4 * hlf - 4 * hlf
            L += [f"v_mul_f32 {vr(TMP+r)}, {vr(vC)}, {vr(a+r)}" for r in rr]
            for r in rr:
                L += [f"v_exp_f32 {vr(TMP+r)}, {vr(TMP+r)}", f"v_mul_f32 {vr(a+r)}, {vr(a+r)}, {vr(a+8+r)}"]
            L += [f"v_fma_f32 {vr(TMP+r)}, {vr(TMP+r)}, {vr(vV)}, {vr(vV)}" for r in rr]
            L += [f"v_rcp_f32 {vr(TMP+r)}, {vr(TMP+r)}" for r in rr]
            L += [f"v_mul_f32 {vr(a+r)}, {vr(a+r)}, {vr(TMP+r)}" for r in rr]
        p = PK + 4 * (t & 1)
        L += [f"v_cvt_pk_bf16_f32 {vr(p+r)}, {vr(a+2*r)}, {vr(a+2*r+1)}" for r in range(4)]
        return L, f"buffer_store_dwordx4 {vr(p,4)}, v1, s[4:7], {sr(30+(t >> 2))} offen offset:{(t & 3)*1024} {st}"
    for t in range(6):
        L, store = epi(t)
        for s in L:
            G.add(done_at[t] + 7, cost_of(s), lambda s=s: e(s))
        G.add(done_at[t] + 7, 4, lambda store=store: e.vmem(store))

    def fill(i):
        F(i)
        G(i)

    def pre(i):
        if i == 128:
            assert G.q[0][0] > 8, "stats not finished before the extension step"
    run_stream(e, S, mf, WB, NB, PD, vL, fill, pre)
    left = len(G.q)
    G.flush()
    assert not F.q
    if left < 12:
        e(f"s_nop {11-left}")
    L, store = epi(6)
    for s in L:
        e(s)
    e.vmem(store)
    sys.stderr.write(f"p4: {left} filler instructions left after the MFMA stream\n")
    tail(e, name)


def main(out):
    e = Em()
    hdr = open(f"cdna_kernels/{NAME}.s.ref").read().split("; Override launch")[0]
    launches = [("p0", 32768), ("p1", 103424), ("p2", 131072), ("p3", 65536), ("p4", 163840), ("p5", 163840),
                ("p1", 103424), ("p2", 131072), ("p3", 65536), ("p4", 163840), ("p5f", 163840)]
    txt = hdr
    for k, lds in launches:
        txt += f"; @launch kernel={k}_kernel grid=(256,1,1) block=(256,1,1) lds={lds}\n"
    txt += '.amdgcn_target "amdgcn-amd-amdhsa--gfx950"\n.text\n'
    gen_p0(e, "p0_kernel")
    gen_p1(e, "p1_kernel")
    gen_p2(e, "p2_kernel")
    gen_p35(e, "p3_kernel", 512, WS_O, WS_WO, WS_XA, WS_XB, WS_STB, CFG["D3"])
    gen_p4(e, "p4_kernel")
    gen_p35(e, "p5_kernel", 1792, WS_H, WS_W2, WS_XB, WS_XA, WS_STA, CFG["D5"])
    gen_p35(e, "p5f_kernel", 1792, WS_H, WS_W2, WS_XB, None, None, CFG["D5"], final=True)
    txt += e.text()
    for k in ("p0", "p1", "p2", "p3", "p4", "p5", "p5f"):
        txt += kdesc(k + "_kernel")
    open(out, "w").write(txt)


if __name__ == "__main__":
    out = sys.argv[1] if len(sys.argv) > 1 else f"cdna_kernels/{NAME}.s"
    for a in sys.argv[2:]:
        k, v = a.split("=", 1)
        CFG[k] = eval(v)
    main(out)
```

```python
import sys
NAME="interleave_layers__softmax_full_mha__glu_gated_swiglu__prompt"
src=open(sys.argv[1]).read()
def mk(kind, out):
    s=src.replace("; @launch grid=(256,1,1) block=(256,1,1) lds=163840\n",
      f"; @launch kernel=warm_kernel grid=(256,1,1) block=(256,1,1) lds=0\n; @launch kernel={NAME}_kernel grid=(256,1,1) block=(256,1,1) lds=163840\n")
    b=["s_cmp_ge_u32 s2, 256","s_cbranch_scc1 L_warm_end","s_load_dwordx16 s[64:79], s[0:1], 0","s_load_dwordx4 s[80:83], s[0:1], 64",
       "s_lshr_b32 s22, s2, 3","s_mov_b32 s15, 0x20000", "s_waitcnt lgkmcnt(0)"]
    if "code" in kind:
        b+=["s_getpc_b64 s[12:13]","L_wpc:",f"s_add_u32 s12, s12, {NAME}_kernel-L_wpc","s_addc_u32 s13, s13, 0",f"s_mov_b32 s14, L_code_end-{NAME}_kernel",
            "s_lshl_b32 s23, s22, 11","v_lshlrev_b32 v2, 3, v0","buffer_load_dwordx2 v[8:9], v2, s[12:15], s23 offen"]
    if "tlb" in kind:
        for p in (64,66,68,72,74,76,78):
            b+=[f"s_mov_b32 s12, s{p}",f"s_mov_b32 s13, s{p+1}","s_mov_b32 s14, 4096","buffer_load_dword v8, off, s[12:15], 0"]
        b+=["s_mov_b32 s12, s82","s_mov_b32 s13, s83","s_mov_b32 s14, 0x4000000","v_and_b32 v2, 63, v0","v_lshlrev_b32 v2, 20, v2","buffer_load_dword v8, v2, s[12:15], 0 offen"]
    if "data" in kind:
        b+=["s_lshl_b32 s23, s2, 13","v_lshlrev_b32 v2, 5, v0"]
        for p,sz in ((64,2097152),(66,1572864),(68,524288),(72,1835008),(74,1835008),(76,1835008)):
            b+=[f"s_mov_b32 s12, s{p}",f"s_mov_b32 s13, s{p+1}",f"s_mov_b32 s14, {sz}","buffer_load_dword v8, v2, s[12:15], s23 offen"]
    b+=["s_waitcnt vmcnt(0)","L_warm_end:","s_endpgm"]
    code=".globl warm_kernel\n.p2align 8\n.type warm_kernel,@function\nwarm_kernel:\n"+"\n".join(x if x.endswith(":") else "    "+x for x in b)+"\n"
    s=s.replace(f".globl {NAME}_kernel", code+f".globl {NAME}_kernel",1)
    s+='''.section .rodata,"a"
.p2align 6
.amdhsa_kernel warm_kernel
  .amdhsa_next_free_vgpr 32
  .amdhsa_next_free_sgpr 96
  .amdhsa_accum_offset 32
  .amdhsa_group_segment_fixed_size 0
  .amdhsa_kernarg_size 80
  .amdhsa_user_sgpr_count 2
  .amdhsa_user_sgpr_kernarg_segment_ptr 1
  .amdhsa_system_sgpr_workgroup_id_x 1
.end_amdhsa_kernel
.text
'''
    open(out,"w").write(s)
for k in ("none","code","tlb","data","code+tlb+data"):
    mk(k, f"vers/w_{k.replace('+','_')}.s")
s=src.replace("; @launch grid=(256,1,1) block=(256,1,1) lds=163840\n", f"; @launch kernel={NAME}_kernel grid=(256,1,1) block=(256,1,1) lds=163840\n"*2)
open("vers/w_twice.s","w").write(s)
```
